```python
import torch

def _softmax(x, axis=-1):
    return torch.softmax(x, dim=axis)
def _gelu(x):
    return torch.nn.functional.gelu(x, approximate="tanh")
def _silu(x):
    return torch.nn.functional.silu(x)
def _sigmoid(x):
    return torch.sigmoid(x)
def _layernorm(x, axis=-1, eps=1e-5):
    m = x.mean(dim=axis, keepdim=True)
    v = x.var(dim=axis, keepdim=True, unbiased=False)
    return (x - m) / torch.sqrt(v + eps)
def _scatter_add(tgt, idx, src, axis=0):
    return tgt.clone().index_add_(axis, idx, src)
def _segment_sum(src, seg, n):
    out = torch.zeros((n,) + src.shape[1:], dtype=src.dtype)
    return out.index_add_(0, seg, src)
def _pad(x, pw):
    flat = tuple(v for pair in reversed(pw) for v in pair)
    return torch.nn.functional.pad(x, flat)

kernel_name = 'concat_heads__mha_block_cached__mha_block_cached__near_ridge'

def setup_inputs():

    _w = (lambda a: (lambda t: t.to(torch.bfloat16) if t.is_floating_point() else t)(torch.as_tensor(a)))
    def _A_setup():
        B, Sq, D = 16, 160, 512
        H, Sk, Dh = 32, 512, 128
        return {
            "x": _w((lambda *s: torch.randn(*s, dtype=torch.bfloat16) * 0.8)(B, Sq, D)),
            "k_cache": _w((lambda *s: torch.randn(*s, dtype=torch.bfloat16) * 0.8)(B, H, Sk, Dh)),
            "v_cache": _w((lambda *s: torch.randn(*s, dtype=torch.bfloat16) * 0.05)(B, H, Sk, Dh)),
            "wq": _w((lambda *s: torch.randn(*s, dtype=torch.bfloat16) * 0.8)(D, H * Dh) * (D ** -0.5)),
            "wo": _w((lambda *s: torch.randn(*s, dtype=torch.bfloat16) * 0.05)(H * Dh, D) * ((H * Dh) ** -0.5)),
        }
    _A_in = _A_setup()

    def _B_setup():
        B, Sq, D = 16, 160, 512
        H, Sk, Dh = 32, 512, 128
        return {
            "x": _w((lambda *s: torch.randn(*s, dtype=torch.bfloat16) * 0.8)(B, Sq, D)),
            "k_cache": _w((lambda *s: torch.randn(*s, dtype=torch.bfloat16) * 0.8)(B, H, Sk, Dh)),
            "v_cache": _w((lambda *s: torch.randn(*s, dtype=torch.bfloat16) * 0.05)(B, H, Sk, Dh)),
            "wq": _w((lambda *s: torch.randn(*s, dtype=torch.bfloat16) * 0.8)(D, H * Dh) * (D ** -0.5)),
            "wo": _w((lambda *s: torch.randn(*s, dtype=torch.bfloat16) * 0.05)(H * Dh, D) * ((H * Dh) ** -0.5)),
        }
    _B_in = _B_setup()

    return {
        "A_x": _A_in["x"],
        "A_k_cache": _A_in["k_cache"],
        "A_v_cache": _A_in["v_cache"],
        "A_wq": _A_in["wq"],
        "A_wo": _A_in["wo"],
        "B_x": _B_in["x"],
        "B_k_cache": _B_in["k_cache"],
        "B_v_cache": _B_in["v_cache"],
        "B_wq": _B_in["wq"],
        "B_wo": _B_in["wo"],
    }

def reference(A_x, A_k_cache, A_v_cache, A_wq, A_wo, B_x, B_k_cache, B_v_cache, B_wq, B_wo):
    def _A_ref(x, k_cache, v_cache, wq, wo):
        B, Sq, D = x.shape
        H, Dh = 32, 128
        q = (lambda x, *d: x.permute(*d))((x @ wq).reshape(B, Sq, H, Dh), 0, 2, 1, 3)
        scores = torch.einsum("bhqd,bhkd->bhqk", q, k_cache) * (Dh ** -0.5)
        p = _softmax(scores, axis=-1)
        o = torch.einsum("bhqk,bhkd->bhqd", p, v_cache)
        return (lambda x, *d: x.permute(*d))(o, 0, 2, 1, 3).reshape(B, Sq, H * Dh) @ wo

    def _B_ref(x, k_cache, v_cache, wq, wo):
        B, Sq, D = x.shape
        H, Dh = 32, 128
        q = (lambda x, *d: x.permute(*d))((x @ wq).reshape(B, Sq, H, Dh), 0, 2, 1, 3)
        scores = torch.einsum("bhqd,bhkd->bhqk", q, k_cache) * (Dh ** -0.5)
        p = _softmax(scores, axis=-1)
        o = torch.einsum("bhqk,bhkd->bhqd", p, v_cache)
        return (lambda x, *d: x.permute(*d))(o, 0, 2, 1, 3).reshape(B, Sq, H * Dh) @ wo

    a = _A_ref(A_x, A_k_cache, A_v_cache, A_wq, A_wo)
    b = _B_ref(B_x, B_k_cache, B_v_cache, B_wq, B_wo)
    return torch.concatenate([a, b], axis=-1)
```

```python
import re


class I:
    __slots__ = ("text", "kind", "rd", "wr", "tag", "c_regs", "ab_regs", "lg", "vm", "note", "pos")

    def __init__(self, text, kind, rd=(), wr=(), tag=None, c_regs=(), ab_regs=(), lg=None, vm=None, note=None):
        self.text = text
        self.kind = kind
        self.rd = frozenset(rd)
        self.wr = frozenset(wr)
        self.tag = tag
        self.c_regs = frozenset(c_regs)
        self.ab_regs = frozenset(ab_regs)
        self.lg = lg
        self.vm = vm
        self.note = note
        self.pos = None

    def __repr__(self):
        return self.text


def R(base, n=1):
    p, i = base[0], int(base[1:])
    return [f"{p}{i + k}" for k in range(n)]


def T(base, n):
    p, i = base[0], int(base[1:])
    if n == 1:
        return base
    return f"{p}[{i}:{i + n - 1}]"


def off(base, k):
    return f"{base[0]}{int(base[1:]) + k}"


def mfma(D, A, B, C):
    if C == 0:
        ct, cr = "0", []
    else:
        ct, cr = T(C, 4), R(C, 4)
        assert C[0] == D[0], "C and D must be the same register class"
    return I(f"v_mfma_f32_16x16x32_bf16 {T(D,4)}, {T(A,4)}, {T(B,4)}, {ct}", "mfma",
             rd=R(A, 4) + R(B, 4) + cr, wr=R(D, 4), c_regs=cr, ab_regs=R(A, 4) + R(B, 4))


def vexp(d, s):
    return I(f"v_exp_f32 {d}, {s}", "trans", rd=[s], wr=[d])


def vrcp(d, s):
    return I(f"v_rcp_f32 {d}, {s}", "trans", rd=[s], wr=[d])


def cvt(d, a, b):
    return I(f"v_cvt_pk_bf16_f32 {d}, {a}, {b}", "valu", rd=[a, b], wr=[d])


def regs_in(txt):
    out = []
    for m in re.finditer(r"\b([vas])\[(\d+):(\d+)\]|\b([vas])(\d+)\b|\b(vcc|m0|exec|scc)\b", txt):
        if m.group(1):
            out += [f"{m.group(1)}{k}" for k in range(int(m.group(2)), int(m.group(3)) + 1)]
        elif m.group(4):
            out.append(f"{m.group(4)}{m.group(5)}")
        else:
            out.append(m.group(6))
    return out


def valu(txt, kind="valu", extra_rd=(), extra_wr=()):
    op, rest = txt.split(None, 1)
    ops = [x.strip() for x in re.split(r",(?![^\[]*\])", rest)]
    wr = regs_in(ops[0])
    rd = []
    for o in ops[1:]:
        rd += regs_in(o)
    if op.startswith("v_pk_"):
        kind = "pk"
    if op.startswith("v_permlane"):
        kind = "perm"
        rd = regs_in(ops[0]) + regs_in(ops[1])
        wr = list(rd)
    if op.startswith("v_readfirstlane"):
        kind = "rfl"
    if op.startswith(("v_exp", "v_rcp", "v_log", "v_rsq")):
        kind = "trans"
    if op.startswith(("v_fmac",)):
        rd += wr
    return I(txt, kind, rd=list(rd) + list(extra_rd), wr=list(wr) + list(extra_wr))


def salu(txt):
    op, *rest = txt.split(None, 1)
    rest = rest[0] if rest else ""
    ops = [x.strip() for x in re.split(r",(?![^\[]*\])", rest)] if rest else []
    if op.startswith("s_cmp"):
        rd = []
        for o in ops:
            rd += regs_in(o)
        return I(txt, "salu", rd=rd, wr=["scc"])
    wr = regs_in(ops[0]) if ops else []
    rd = []
    for o in ops[1:]:
        rd += regs_in(o)
    if op.startswith(("s_cselect", "s_addc", "s_subb")):
        rd.append("scc")
    if not op.startswith(("s_mov", "s_cselect", "s_mul", "s_nop", "s_setprio", "s_load", "s_getreg", "s_movk")):
        wr = wr + ["scc"]
    return I(txt, "salu", rd=rd, wr=wr)


def nop(n=0):
    return I(f"s_nop {n}", "nop", note=n + 1)


def ds_r128(d, a, o, tag=None):
    assert 0 <= o < 65536, o
    return I(f"ds_read_b128 {T(d,4)}, {a} offset:{o}", "ds", rd=[a], wr=R(d, 4), tag=tag)


def ds_rtr(d, a, o, tag=None):
    assert 0 <= o < 65536, o
    return I(f"ds_read_b64_tr_b16 {T(d,2)}, {a} offset:{o}", "ds", rd=[a], wr=R(d, 2), tag=tag)


def ds_r32(d, a, o, tag=None):
    return I(f"ds_read_b32 {d}, {a} offset:{o}", "ds", rd=[a], wr=[d], tag=tag)


def ds_w128(a, s, o, tag=None):
    assert 0 <= o < 65536, o
    return I(f"ds_write_b128 {a}, {T(s,4)} offset:{o}", "dsw", rd=[a] + R(s, 4), tag=tag)


def ds_w32(a, s, o, tag=None):
    return I(f"ds_write_b32 {a}, {s} offset:{o}", "dsw", rd=[a, s], tag=tag)


def dma(va, srd, so, o, tag=None, nt=False):
    assert 0 <= o < 4096
    return I(f"buffer_load_dwordx4 {va}, {T(srd,4)}, {so} offen offset:{o}{' nt' if nt else ''} lds", "dma",
             rd=[va, "m0"] + R(srd, 4) + regs_in(str(so)), tag=tag)


def vst4(s, va, srd, so, o, flags=""):
    assert 0 <= o < 4096
    return I(f"buffer_store_dwordx4 {T(s,4)}, {va}, {T(srd,4)}, {so} offen offset:{o}{' ' + flags if flags else ''}", "vst",
             rd=[va] + R(s, 4) + R(srd, 4) + regs_in(str(so)), note=frozenset(R(s, 4)))


def vld4(d, va, srd, so, o, flags=""):
    assert 0 <= o < 4096
    return I(f"buffer_load_dwordx4 {T(d,4)}, {va}, {T(srd,4)}, {so} offen offset:{o}{' ' + flags if flags else ''}", "vld",
             rd=[va] + R(srd, 4) + regs_in(str(so)), wr=R(d, 4))


def wait(lg=None, vm=None):
    parts = []
    if vm is not None:
        assert 0 <= vm <= 63
        parts.append(f"vmcnt({vm})")
    if lg is not None:
        assert 0 <= lg <= 15
        parts.append(f"lgkmcnt({lg})")
    return I("s_waitcnt " + " ".join(parts), "wait", lg=lg, vm=vm)


def barrier():
    return I("s_barrier", "bar")


def label(name):
    return I(f"{name}:", "label")


def br(txt):
    rd = []
    if "scc" in txt:
        rd = ["scc"]
    if "vcc" in txt:
        rd = ["vcc"]
    return I(txt, "br", rd=rd)


def raw(txt):
    return I(txt, "raw")


VEC_KINDS = ("valu", "trans", "pk", "perm", "rfl")


class Item:
    def __init__(self, key, cls, est, dl, after=None, lag=0, pre=0):
        self.key, self.cls, self.est, self.dl, self.after, self.lag, self.pre = key, cls, est, dl, after, lag, pre


def schedule(period, items, reserved_sc=(), blocked=()):
    vec = [0] * period
    sc = [0] * period
    has_valu = [False] * period
    for g in reserved_sc:
        sc[g % period] += 1
    for g in blocked:
        vec[g % period] = 2
        sc[g % period] = 1
    placed = {}
    todo = sorted(items, key=lambda it: (it.dl, it.est))
    progress = True
    pend = list(todo)
    while pend:
        moved = False
        for it in list(pend):
            if it.after is not None and any(a not in placed for a in (it.after if isinstance(it.after, list) else [it.after])):
                continue
            lo = it.est
            if it.after is not None:
                for a in (it.after if isinstance(it.after, list) else [it.after]):
                    lo = max(lo, placed[a] + it.lag)
            need = {"ds": 1, "valu": 1, "trans": 2, "full": 2, "sc": 0}[it.cls]
            ok = None
            for g in range(lo, it.dl + 1):
                k = g % period
                extra_sc = it.pre + (1 if it.cls == "sc" else 0)
                tot_sc = sc[k] + extra_sc
                slots = max(0, tot_sc - 1) + vec[k] + need
                if slots > 2:
                    continue
                ok = g
                break
            if ok is None:
                raise RuntimeError(f"cannot place {it.key} in [{lo},{it.dl}]")
            k = ok % period
            vec[k] += need
            sc[k] += it.pre + (1 if it.cls == "sc" else 0)
            placed[it.key] = ok
            pend.remove(it)
            moved = True
            break
        if not moved:
            raise RuntimeError("dependency cycle in schedule")
    return placed


def order_gap(ins):
    sc = [i for i in ins if i.kind in ("salu", "wait", "nop", "br", "bar")]
    mem = [i for i in ins if i.kind in ("ds", "dsw", "dma", "vst", "vld")]
    va = [i for i in ins if i.kind in VEC_KINDS]
    return sc + mem + va


class Stream:
    def __init__(self):
        self.gaps = []

    def add(self, m, fill):
        self.gaps.append((m, list(fill)))


def states(ins):
    if ins.kind == "nop":
        return ins.note
    if ins.kind in ("label", "raw"):
        return 0
    return 1


def check_hazards(trace, name="", fix=False):
    errs = []
    n = len(trace)
    W = 24
    for j in range(n):
        c = trace[j]
        if c.kind in ("label", "raw", "nop", "wait", "bar"):
            continue
        dist = 0
        for i in range(j - 1, max(-1, j - W - 1), -1):
            p = trace[i]
            need = 0
            why = ""
            if p.kind == "mfma":
                ovr = p.wr & c.rd
                ovw = p.wr & c.wr
                if c.kind == "mfma":
                    if p.wr & c.ab_regs:
                        need, why = 8, "mfma D -> mfma A/B"
                    elif p.wr & c.c_regs and p.wr != c.c_regs:
                        need, why = 6, "mfma D -> mfma C partial"
                    elif ovw and not (p.wr == c.c_regs):
                        need, why = 8, "mfma D -> mfma D (WAW, no chain)"
                elif c.kind in VEC_KINDS and (ovr or ovw):
                    need, why = 8, "mfma D -> valu"
                elif c.kind in ("ds", "dsw", "dma", "vst", "vld") and (ovr or ovw):
                    need, why = 8, "mfma D -> mem"
                if c.kind in VEC_KINDS and (p.c_regs & c.wr) and need < 3:
                    need, why = 3, "mfma C read -> valu write"
            elif p.kind in VEC_KINDS:
                ov = p.wr & c.rd
                if c.kind == "mfma" and ov:
                    need, why = 2, "valu -> mfma"
                elif c.kind == "perm" and ov:
                    need, why = 2, "valu -> permlane"
                elif c.kind == "rfl" and ov:
                    need, why = 1, "valu -> readfirstlane"
                elif p.kind == "trans" and c.kind in VEC_KINDS and c.kind != "trans" and ov:
                    need, why = 1, "trans -> valu"
                sg = {r for r in ov if r[0] == "s" or r == "vcc"}
                if sg:
                    if c.kind in VEC_KINDS:
                        need, why = max(need, 2), "valu sgpr -> valu"
                    elif c.kind in ("dma", "vst", "vld"):
                        need, why = max(need, 5), "valu sgpr -> vmem"
            elif p.kind == "salu":
                if "m0" in p.wr and c.kind == "dma":
                    need, why = 1, "m0 -> dma"
            elif p.kind == "vst":
                if c.kind in VEC_KINDS and (p.note & c.wr):
                    need, why = 2, "store data WAR"
                elif c.kind in ("ds", "vld", "mfma") and (p.note & c.wr):
                    need, why = 1, "store data WAR"
            if need > dist:
                errs.append((j, need - dist, f"{name}[{j}] {why}: '{p.text}' -> '{c.text}' dist {dist} need {need}"))
            dist += states(p)
            if dist >= 10:
                break
    return errs


def insert_nops(code):
    code = list(code)
    for _ in range(10000):
        errs = check_hazards(code)
        if not errs:
            return code
        j, extra, _m = errs[0]
        mx = max(e for (jj, e, _x) in errs if jj == j)
        code.insert(j, nop(mx - 1))
    raise RuntimeError("insert_nops did not converge")


def blocks(*ranges):
    out = set()
    for lo, n in ranges:
        assert lo % 1024 == 0 and n % 1024 == 0 and lo + n <= 163840, (lo, n)
        out |= set(range(lo // 1024, (lo + n) // 1024))
    return frozenset(out)


def check_counters(trace, name=""):
    errs = []
    lg = []
    vm = []
    done = set()
    holder = {}
    visible = set()
    dirty = set()
    for j, c in enumerate(trace):
        if c.kind == "wait":
            if c.lg is not None:
                while len(lg) > c.lg:
                    e, d = lg.pop(0)
                    done.add(e)
            if c.vm is not None:
                while len(vm) > c.vm:
                    e, d = vm.pop(0)
                    done.add(e)
            continue
        if c.kind == "bar":
            visible |= done
            dirty = set()
            for e, d in lg:
                if d.kind == "ds" and d.tag is not None:
                    dirty |= d.tag[0]
            continue
        if c.kind in ("label", "raw", "nop"):
            continue
        touched = c.rd | c.wr
        for e, d in lg:
            if d.kind == "ds" and d.wr & (c.rd if c.kind == "ds" else touched):
                errs.append(f"{name}[{j}] lgkm: '{c.text}' touches regs of outstanding '{d.text}'")
        for e, d in vm:
            if d.kind == "vld" and d.wr & touched:
                errs.append(f"{name}[{j}] vm: '{c.text}' touches regs of outstanding '{d.text}'")
        if c.kind in ("ds", "dsw"):
            if len(lg) >= 15:
                errs.append(f"{name}[{j}] more than 15 outstanding lgkm ops at '{c.text}'")
            lg.append((j, c))
        if c.kind in ("dma", "vst", "vld"):
            if len(vm) >= 63:
                errs.append(f"{name}[{j}] more than 63 outstanding vm ops")
            vm.append((j, c))
        if c.tag is not None and c.kind == "ds":
            bl, ver = c.tag
            for b in (sorted(bl) if ver is not None else []):
                h = holder.get(b)
                if h is None or h[0] != ver:
                    errs.append(f"{name}[{j}] '{c.text}' expects {ver} in block {b}, holds {h and h[0]}")
                    break
                if h[1] not in visible:
                    errs.append(f"{name}[{j}] '{c.text}' reads {ver} block {b} not yet visible")
                    break
            dirty |= bl
        if c.tag is not None and c.kind in ("dma", "dsw"):
            bl, ver = c.tag
            if bl & dirty:
                errs.append(f"{name}[{j}] '{c.text}' writes {ver} over blocks {sorted(bl & dirty)} read since last barrier")
            for b in bl:
                h = holder.get(b)
                if h is not None and h[1] not in visible and h[0] != ver:
                    errs.append(f"{name}[{j}] '{c.text}' writes {ver} block {b} while earlier write {h[0]} in flight")
                    break
            for b in bl:
                holder[b] = (ver, j)
    return errs
```

```python
import sys
import math
import struct
from asmlib import *

NAME = "concat_heads__mha_block_cached__mha_block_cached__near_ridge"

OPT = dict(dump=None, nt_kv=True, nt_w=False, stamp=False, force_fb=False)

sX, sWQ, sK, sV, sWO, sWS = "s8", "s12", "s16", "s20", "s24", "s28"
sWV, sHP, sQH, sRND, sCNT, sOK, sOV, sMKV = "s32", "s33", "s34", "s35", "s36", "s37", "s38", "s39"
sXK, sWK = "s40", "s41"
sT = ["s42", "s43", "s44", "s45", "s46", "s47", "s48", "s49"]
sMWQ, sMX, sXW = "s50", "s51", "s52"
sC = "s54"
sMWO, sWOown, sWOpar, sPASS, sST, sSAFE, sROT = "s56", "s57", "s58", "s59", "s60", "s61", "s62"
sTMP, sTMP2 = "s63", "s53"
sDBG = "s64"

AK = ["v4", "v5", "v6", "v7"]
AV = [f"v{8 + i}" for i in range(8)]
VKV = [f"v{16 + i}" for i in range(4)]
AX = ["v20", "v21"]
AWQ = [f"v{22 + i}" for i in range(4)]
VX = ["v26", "v27"]
VWQ = "v28"
VWO, VST, VFL = "v29", "v30", "v31"
ONES = "v32"
FB = ["v36", "v40", "v44", "v48", "a240", "a244", "a248", "a252"]
LB, NM = 52, 72
QFB, SB, PB = 92, 172, 212
AWO = [f"v{4 + i}" for i in range(8)]


def L_(qt): return f"v{LB + 4 * qt}"
def NEGM(qt): return f"v{NM + 4 * qt}"
def XB(par, qt): return f"v{LB + 20 * par + 4 * qt}"
def QF(s, qt): return f"v{QFB + 4 * (s * 5 + qt)}"
def QACC(u, qt): return f"v{QFB + 8 * ((u >> 1) * 5 + qt) + 4 * (u & 1)}"
def S_(t, qt): return f"v{SB + 4 * (t * 5 + qt)}"
def P_(buf, qt): return f"v{PB + 20 * buf + 4 * qt}"
def OACC(u, qt): return f"a{4 * (u * 5 + qt)}"
def HF(s, qt): return f"a{160 + 4 * (s * 5 + qt)}"
def OUT(v, qt): return f"v{SB + 4 * (v * 5 + qt)}"
def PK(qt, y): return f"v{LB + 4 * (qt * 2 + y)}"


XRING = 24576
WQB = [122880, 90112]
FLAGS = 155648
WSLOT = [122880, 90112, 0, 32768]
KVSZ = 262144


def blk_K(slot): return blocks((slot * 16384, 8192), (65536 + slot * 16384, 8192))
def blk_V(slot): return blocks((slot * 16384 + 8192, 8192), (65536 + slot * 16384 + 8192, 8192))


def blk_KVi(base, i):
    return blocks(*[(h * 65536 + base + q * 4096 + i * 1024, 1024) for h in range(2) for q in range(2)])


def blk_wq(slot): return blocks(*[(WQB[h] + slot * 8192, 8192) for h in range(2)])
def blk_wqi(slot, i): return blocks(*[(WQB[h] + slot * 8192 + q * 4096 + i * 1024, 1024) for h in range(2) for q in range(2)])
def blk_x(par): return blocks((XRING + par * 20480, 20480))
def blk_xi(par, ii): return blocks(*[(XRING + par * 20480 + w * 5120 + ii * 1024, 1024) for w in range(4)])
def blk_wo(slot): return blocks((WSLOT[slot], 32768))
def blk_woi(slot, i): return blocks(*[(WSLOT[slot] + w * 8192 + i * 1024, 1024) for w in range(4)])


class Ctx:
    def __init__(self):
        self.W = {}
        self.need = {}


CTX = Ctx()


NOPS = {}


def seg(name, code):
    out = []
    for k, i in enumerate(code):
        i.pos = (name, k)
        if (name, k) in NOPS:
            out.append(nop(NOPS[(name, k)] - 1))
        out.append(i)
    return out


def wsite(key):
    n = CTX.W.get(key, "unset")
    if n == "unset":
        i = I(f"s_waitcnt lgkmcnt(0)", "wsite", note=key)
        return [i]
    if n is None:
        return []
    w = wait(lg=n)
    return [w]


def resolve_sites(trace):
    need = {}
    lg = []
    n = len(trace)
    for j, c in enumerate(trace):
        if c.kind == "wait":
            if c.lg is not None:
                while len(lg) > c.lg:
                    lg.pop(0)
            continue
        if c.kind == "wsite":
            youngest = -1
            for k in range(j + 1, n):
                d = trace[k]
                if d.kind == "wsite" or (d.kind == "wait" and d.lg == 0):
                    break
                touched = d.rd | d.wr
                for idx, o in enumerate(lg):
                    if o.kind == "ds" and o.wr & touched:
                        youngest = max(youngest, idx)
            if youngest >= 0:
                req = len(lg) - 1 - youngest
                need[c.note] = min(need.get(c.note, 99), req) if need.get(c.note) is not None else req
                while len(lg) > req:
                    lg.pop(0)
            else:
                need.setdefault(c.note, None)
            continue
        if c.kind in ("ds", "dsw"):
            lg.append(c)
    return need


def emit_gaps(mf, fill):
    out = []
    for g, m in enumerate(mf):
        if m is not None:
            out.append(m)
        ins = fill.get(g, [])
        sc = [i for i in ins if i.kind in ("salu", "wait", "nop", "br", "bar", "wsite", "label")]
        mem = [i for i in ins if i.kind in ("ds", "dsw", "dma", "vst", "vld")]
        va = [i for i in ins if i.kind in VEC_KINDS]
        assert len(sc) + len(mem) + len(va) == len(ins)
        out += sc + mem + va
    return out


QB = 26


def q_schedule():
    items = []
    res = []
    blocked = []
    for par in range(2):
        o = 40 * par
        blocked.append(o + QB)
        for u in range(8):
            res.append(o + 5 * u - 1)
        for u in range(8):
            use = o + 40 + 5 * u
            est = max(o + QB + 1, o + 5 * u + 5, use - 16)
            for jj in range(2):
                items.append(Item(("wr", par, u, jj), "ds", est, use - 7))
        for qt in range(5):
            items.append(Item(("xr", par, qt), "ds", o + QB + 1, o + 33))
        prev = None
        e0 = o + 35
        if par == 1:
            items.append(Item(("xm0", 0), "sc", e0 - 1, o + 60))
            prev = ("xm0", 0)
            for ii in range(5):
                if ii == 4:
                    items.append(Item(("xm0", 1), "sc", e0, o + 62, after=prev, lag=1))
                    prev = ("xm0", 1)
                items.append(Item(("xso", ii), "sc", e0 - 1, o + 62, after=prev, lag=0))
                items.append(Item(("xd", ii), "full", e0, o + 63, after=[("xso", ii), prev], lag=1))
                prev = ("xd", ii)
        items.append(Item(("wm0", par), "sc", e0 - 1, o + 62, after=prev, lag=1 if prev else 0))
        prev = ("wm0", par)
        for i in range(4):
            items.append(Item(("wso", par, i), "sc", e0 - 1, o + 64, after=prev, lag=0))
            items.append(Item(("wd", par, i), "full", e0, o + 65, after=[("wso", par, i), prev], lag=1))
            prev = ("wd", par, i)
        items.append(Item(("wadv", par), "sc", e0, o + 65, after=prev, lag=1))
        items.append(Item(("wadv2", par), "sc", e0, o + 65, after=("wadv", par), lag=1))
    items.append(Item(("xadv", 0), "sc", 40 + 35, 40 + 65, after=("xd", 4), lag=1))
    items.append(Item(("xadv", 1), "sc", 40 + 35, 40 + 65, after=("xadv", 0), lag=1))
    nz = 40
    for z in range(2 * nz):
        items.append(Item(("z", z), "valu", 0, 500 + z))
    return schedule(80, items, res, blocked), nz


QS, QNZ = q_schedule()


def q_kstep(e, rnd, first=False, last=False):
    par = e & 1
    mf = []
    for u in range(8):
        for qt in range(5):
            mf.append(mfma(QACC(u, qt), FB[u], XB(par, qt), 0 if first else QACC(u, qt)))
    fill = {}

    def put(g, ins):
        fill.setdefault(g, []).extend(ins if isinstance(ins, list) else [ins])

    for u in range(8):
        if u > 0:
            put(5 * u - 1, wsite(("q", e & 3 if not first else "f", u)))
    put(39, wsite(("q", e & 3 if not first else "f", 0)))
    put(QB, [wait(lg=0, vm=(8 if par else 13)), barrier()])
    for key, ag in QS.items():
        kind = key[0]
        if kind == "z":
            g = ag % 80
            if g // 40 == par:
                zi = ((e >> 1) & 1) * 2 * QNZ + key[1]
                if zi < 160 and not first:
                    put(g % 40, valu(f"v_accvgpr_write_b32 a{zi}, 0"))
            continue
        kpar = 1 if kind in ("xm0", "xso", "xd", "xadv") else key[1]
        o = 40 * kpar
        rel = ag - o
        if rel < 40:
            own = e if kpar == par else None
            g = rel
        else:
            own = e - 1 if kpar != par else None
            g = rel - 40
        if own is None or (own < 0 and kind != "wr"):
            continue
        if kind == "wr":
            _, _, u, jj = key
            ee = own + 1
            s, t = u >> 1, u & 1
            put(g, ds_rtr(off(FB[u], 2 * jj), AWQ[s], (ee & 3) * 8192 + 1024 * jj + 8 * t, tag=(blk_wq(ee & 3), ("wq", rnd, ee) if ee < 16 else None)))
        elif kind == "xr":
            qt = key[2]
            ee = own + 1
            c = ee >> 1
            put(g, ds_r128(XB(ee & 1, qt), AX[ee & 1], (c & 1) * 20480 + qt * 2048, tag=(blk_x(c & 1), ("x", rnd, c) if ee < 16 else None)))
        elif kind == "xm0":
            c = (own + 3) >> 1
            put(g, salu(f"s_add_u32 m0, {sMX}, {(c & 1) * 20480 + key[1] * 4096}"))
        elif kind == "xso":
            ii = key[1]
            put(g, salu(f"s_add_u32 {sT[4 + (ii & 1)]}, {sXK}, {ii * 8192 - (ii & 3) * 1024}"))
        elif kind == "xd":
            ii = key[1]
            c = (own + 3) >> 1
            put(g, dma(VX[ii & 1], sX, sT[4 + (ii & 1)], (ii & 3) * 1024, tag=(blk_xi(c & 1, ii), ("x", rnd, c)), nt=OPT["nt_w"]))
        elif kind == "xadv":
            if key[1] == 0:
                put(g, salu(f"s_add_u32 {sTMP}, {sXK}, 128"))
            else:
                put(g, salu(f"s_andn2_b32 {sXK}, {sTMP}, 1024"))
        elif kind == "wm0":
            put(g, salu(f"s_add_u32 m0, {sMWQ}, {(own & 3) * 8192}"))
        elif kind == "wso":
            i = key[2]
            put(g, salu(f"s_add_u32 {sT[i & 1]}, {sWK}, {i * 31744}"))
        elif kind == "wd":
            i = key[2]
            put(g, dma(VWQ, sWQ, sT[i & 1], i * 1024, tag=(blk_wqi(own & 3, i), ("wq", rnd, own + 4)), nt=OPT["nt_w"]))
        elif kind == "wadv":
            put(g, salu(f"s_add_u32 {sWK}, {sWK}, 262144"))
        elif kind == "wadv2":
            put(g, salu(f"s_and_b32 {sWK}, {sWK}, 0x3fffff"))
    if (e & 3) == 0 and not first:
        put(28, salu(f"s_cmp_eq_u32 {sCNT}, 2"))
        put(30, salu(f"s_cselect_b32 s10, 0, s10"))
        put(31, salu(f"s_cselect_b32 s14, 0, s14"))
    return emit_gaps(mf, fill)


def q_initial_dmas(rnd):
    c = []
    c.append(salu(f"s_mov_b32 s10, 163840"))
    c.append(salu(f"s_mov_b32 s14, {sTMP2}"))
    c.append(salu(f"s_lshl_b32 {sXK}, {sROT}, 7"))
    c.append(salu(f"s_add_u32 {sXK}, {sXK}, {sXW}"))
    c.append(salu(f"s_lshl_b32 {sWK}, {sROT}, 19"))
    c.append(salu(f"s_lshl_b32 {sTMP}, {sRND}, 8"))
    c.append(salu(f"s_add_u32 {sWK}, {sWK}, {sTMP}"))

    def xch(cc):
        for ii in range(5):
            if ii in (0, 4):
                c.append(salu(f"s_add_u32 m0, {sMX}, {(cc & 1) * 20480 + (ii // 4) * 4096}"))
            c.append(salu(f"s_add_u32 {sT[4]}, {sXK}, {ii * 8192 - (ii & 3) * 1024}"))
            c.append(dma(VX[ii & 1], sX, sT[4], (ii & 3) * 1024, tag=(blk_xi(cc & 1, ii), ("x", rnd, cc)), nt=OPT["nt_w"]))
        c.append(salu(f"s_add_u32 {sTMP}, {sXK}, 128"))
        c.append(salu(f"s_andn2_b32 {sXK}, {sTMP}, 1024"))

    def wq(e):
        c.append(salu(f"s_add_u32 m0, {sMWQ}, {(e & 3) * 8192}"))
        for i in range(4):
            c.append(salu(f"s_add_u32 {sT[0]}, {sWK}, {i * 31744}"))
            c.append(dma(VWQ, sWQ, sT[0], i * 1024, tag=(blk_wqi(e & 3, i), ("wq", rnd, e)), nt=OPT["nt_w"]))
        c.append(salu(f"s_add_u32 {sWK}, {sWK}, 262144"))
        c.append(salu(f"s_and_b32 {sWK}, {sWK}, 0x3fffff"))

    xch(0); wq(0); wq(1); xch(1); wq(2); wq(3)
    return c


def kv_dma(which, step, so_expr_reg):
    slot = step & 3
    base = slot * 16384 + (8192 if which == "V" else 0)
    c = [salu(f"s_add_u32 m0, {sMKV}, {base}"), nop(0)]
    for i in range(4):
        c.append(dma(VKV[i], sK if which == "K" else sV, so_expr_reg, i * 1024, tag=(blk_KVi(base, i), (which, step)), nt=OPT["nt_kv"]))
    return c


def kv_group(lst, rnd):
    c = []
    for which, st in lst:
        c.append(salu(f"s_lshl_b32 {sTMP}, {sRND}, 17"))
        c.append(salu(f"s_add_u32 {sT[0]}, {sTMP}, {st * 8192}"))
        c += kv_dma(which, rnd * 16 + st, sT[0])
    return c


def q_entry(rnd):
    c = [wait(vm=17), barrier()]
    for jj in range(2):
        c.append(ds_rtr(off(FB[0], 2 * jj), AWQ[0], 1024 * jj, tag=(blk_wq(0), ("wq", rnd, 0))))
    for qt in range(5):
        c.append(ds_r128(XB(0, qt), AX[0], qt * 2048, tag=(blk_x(0), ("x", rnd, 0))))
    for u in range(1, 8):
        for jj in range(2):
            if QS[("wr", 1, u, jj)] - 40 < 40:
                s, t = u >> 1, u & 1
                c.append(ds_rtr(off(FB[u], 2 * jj), AWQ[s], 1024 * jj + 8 * t, tag=(blk_wq(0), ("wq", rnd, 0))))
    c += wsite(("qe",))
    return c


AB = 70


def a_schedule():
    items = []
    res = [5 * g - 1 for g in range(1, 8)] + [44 + 5 * u for u in range(8)] + [84]
    blocked = [AB]
    for u in range(8):
        use = 45 + 5 * u
        for jj in range(2):
            items.append(Item(("vr", u, jj), "ds", max(5 * u + 5, 20 + 4 * u), min(use - 7, AB - 7)))
    for f in range(8):
        use = 85 + 5 * f
        items.append(Item(("kr", f), "ds", max(AB + 1, 50 + 5 * f, use - 20), use - 7))
    for t in range(2):
        for qt in range(5):
            lastm = 20 * t + 15 + qt
            dl = 85 + 20 * t + qt - 1
            for r in range(4):
                items.append(Item(("e", t, qt, r), "trans", lastm + 7, dl - 1))
            for h in range(2):
                items.append(Item(("c", t, qt, h), "valu", lastm + 8, dl, after=[("e", t, qt, 2 * h), ("e", t, qt, 2 * h + 1)], lag=1))
    prev = None
    for w in ("K", "V"):
        items.append(Item(("m0", w), "sc", AB + 1, AB + 40, after=prev, lag=1 if prev else 0))
        prev = ("m0", w)
        for i in range(4):
            items.append(Item(("d", w, i), "full", AB + 2, AB + 45, after=prev, lag=1))
            prev = ("d", w, i)
        items.append(Item(("adv", w), "sc", AB + 2, AB + 50, after=prev, lag=1))
    return schedule(85, items, res, blocked)


AS = a_schedule()


def a_iter(j, rnd):
    G = rnd * 16
    has_qk = j < 15
    has_pv = j >= 0
    skey = "p" if j < 0 else ("t" if j == 15 else j & 3)
    mf = []
    for t in range(2):
        for s in range(4):
            for qt in range(5):
                mf.append(mfma(S_(t, qt), FB[t * 4 + s], QF(s, qt), NEGM(qt) if s == 0 else S_(t, qt)) if has_qk else None)
    pb = j & 1
    for qt in range(5):
        mf.append(mfma(L_(qt), ONES, P_(pb, qt), L_(qt)) if has_pv else None)
    for u in range(8):
        for qt in range(5):
            mf.append(mfma(OACC(u, qt), FB[u], P_(pb, qt), OACC(u, qt)) if has_pv else None)
    fill = {}

    def put(g, ins):
        fill.setdefault(g, []).extend(ins if isinstance(ins, list) else [ins])

    for g in [5 * k - 1 for k in range(1, 8)] + [44 + 5 * u for u in range(8)] + [84]:
        put(g, wsite(("a", skey, g)))
    if j < 15:
        put(AB, [wait(lg=0, vm=16), barrier()])
    for key, ag in AS.items():
        kind = key[0]
        own = j if ag < 85 else j - 1
        g = ag % 85
        if own < -1:
            continue
        if kind == "vr":
            if own < 0:
                continue
            _, u, jj = key
            put(g, ds_rtr(off(FB[u], 2 * jj), AV[u], (own & 3) * 16384 + jj * 4096, tag=(blk_V(own & 3), ("V", G + own))))
        elif kind == "kr":
            st = own + 2
            if j == 15:
                continue
            f = key[1]
            put(g, ds_r128(FB[f], AK[f & 3], (st & 3) * 16384 + (f >> 2) * 4096, tag=(blk_K(st & 3), ("K", G + st) if st < 16 else None)))
        elif kind == "e":
            if own + 1 > 15:
                continue
            _, t, qt, r = key
            put(g, vexp(off(S_(t, qt), r), off(S_(t, qt), r)))
        elif kind == "c":
            if own + 1 > 15:
                continue
            _, t, qt, h = key
            put(g, cvt(off(P_((own + 1) & 1, qt), 2 * t + h), off(S_(t, qt), 2 * h), off(S_(t, qt), 2 * h + 1)))
        elif kind in ("m0", "d", "adv"):
            if j == 15:
                continue
            w = key[1]
            st = own + 5 if w == "K" else own + 4
            base = (st & 3) * 16384 + (8192 if w == "V" else 0)
            if kind == "m0":
                put(g, salu(f"s_add_u32 m0, {sMKV}, {base}"))
            elif kind == "d":
                i = key[2]
                ver = (w, G + st) if own < 13 else ("dummy", w, G + st)
                put(g, dma(VKV[i], sK if w == "K" else sV, sOK if w == "K" else sOV, i * 1024, tag=(blk_KVi(base, i), ver), nt=OPT["nt_kv"]))
            else:
                r_ = sOK if w == "K" else sOV
                put(g, salu(f"s_add_u32 {r_}, {r_}, 8192"))
    if j >= 0 and (j & 3) == 1:
        put(60, salu(f"s_cmp_eq_u32 {sCNT}, 3"))
        put(61, salu(f"s_cselect_b32 s18, 0, s18"))
        put(62, salu(f"s_cselect_b32 s22, 0, s22"))
    if j < 0:
        for k in range(20):
            put(k, valu(f"v_mov_b32 v{LB + k}, 0"))
    return emit_gaps(mf, fill)


def a_entry(rnd):
    c = []
    c.append(salu(f"s_lshl_b32 {sTMP}, {sRND}, 17"))
    c.append(salu(f"s_add_u32 {sOK}, {sTMP}, {4 * 8192}"))
    c.append(salu(f"s_add_u32 {sOV}, {sTMP}, {3 * 8192}"))
    c.append(salu(f"s_mov_b32 {sCNT}, 0"))
    for f in range(8):
        c.append(ds_r128(FB[f], AK[f & 3], (f >> 2) * 4096, tag=(blk_K(0), ("K", rnd * 16))))
    c += wsite(("ae",))
    return c


OB = 66


def o_schedule():
    items = []
    res = []
    blocked = []
    for sl in range(4):
        o = 80 * sl
        blocked.append(o + OB)
        res += [o + 5 * G - 1 for G in range(16)]
        for G in range(16):
            use = o + 5 * G
            est = max(use - 18, o + 5 * (G - 8) + 5, o - 80 + OB + 1)
            dl = min(use - 7, o + OB - 7)
            for jj in range(2):
                items.append(Item(("r", sl, G, jj), "ds", est + 320, dl + 320))
        prev = None
        e0 = o + OB + 1 if sl < 3 else 320
        for i in range(8):
            if i in (0, 4):
                items.append(Item(("m0", sl, i), "sc", e0, o + OB + 66, after=prev, lag=1 if prev else 0))
                prev = ("m0", sl, i)
            items.append(Item(("so", sl, i), "sc", e0, o + OB + 68, after=prev, lag=0))
            items.append(Item(("d", sl, i), "full", e0 + 1, o + OB + 70, after=[("so", sl, i), prev], lag=1))
            prev = ("d", sl, i)
    for v in range(4):
        for qt in range(5):
            i = v * 5 + qt
            for h in range(2):
                items.append(Item(("c", v, qt, h), "valu", 300 + i + 7, 320 + i - 1))
    prev = None
    for y in range(2):
        for qt in range(5):
            dep = [("c", 2 * y + t, qt, h) for t in range(2) for h in range(2)]
            if prev:
                dep.append(prev)
            items.append(Item(("st", qt, y), "full", 300, 320 + 75, after=dep, lag=1))
            prev = ("st", qt, y)
    items.append(Item(("stadv",), "sc", 300, 320 + 78, after=prev, lag=1))
    items.append(Item(("stsz", 0), "sc", 300, 320 + 120, after=("stadv",), lag=1))
    items.append(Item(("stsz", 1), "sc", 300, 320 + 120, after=("stadv",), lag=1))
    items.append(Item(("stsz", 2), "sc", 300, 320 + 120, after=("stadv",), lag=1))
    items.append(Item(("padv", 0), "sc", 320, 320 + OB - 3, after=("d", 3, 7), lag=1))
    items.append(Item(("padv", 1), "sc", 320, 320 + OB - 3, after=("d", 3, 7), lag=1))
    return schedule(320, items, res, blocked)


OS = o_schedule()


def o_bfrag(sl, ks, qt):
    if sl == 0:
        return HF(ks, qt)
    if sl == 1:
        return QF(ks, qt)
    return f"a{(sl - 2) * 80 + 4 * (ks * 5 + qt)}"


def o_soff(sl):
    return (sWOown if sl < 2 else sWOpar), (sl & 1) * 131072


def o_rd(sl, G, jj, p):
    ks, v = G >> 2, G & 3
    hi = sl < 2
    a = AWO[4 + v] if hi else AWO[v]
    base = WSLOT[sl] - (WSLOT[1] if hi else 0)
    return ds_rtr(off(FB[G & 7], 2 * jj), a, base + ks * 4096 + jj * 2048, tag=(blk_wo(sl), ("wo", p, sl) if p < 4 else None))


def o_dma_slot(sl, p):
    c = []
    b, k = o_soff(sl)
    for i in range(8):
        if i in (0, 4):
            c.append(salu(f"s_add_u32 m0, {sMWO}, {WSLOT[sl] + (i // 4) * 4096}"))
        c.append(salu(f"s_add_u32 {sT[0]}, {b}, {k + i * 8192 - (i & 3) * 1024 + 256}"))
        c.append(dma(VWO, sWO, sT[0], (i & 3) * 1024, tag=(blk_woi(sl, i), ("wo", p, sl)), nt=OPT["nt_w"]))
    return c


def o_pass(p, tail=False):
    mf = []
    for sl in range(4):
        for ks in range(4):
            for v in range(4):
                for qt in range(5):
                    mf.append(None if tail else mfma(OUT(v, qt), FB[(ks * 4 + v) & 7], o_bfrag(sl, ks, qt), 0 if (sl == 0 and ks == 0) else OUT(v, qt)))
    fill = {}

    def put(g, ins):
        fill.setdefault(g, []).extend(ins if isinstance(ins, list) else [ins])

    if not tail:
        for sl in range(4):
            for G in range(16):
                put((80 * sl + 5 * G - 1) % 320, wsite(("o", sl, G)))
            put(80 * sl + OB, [wait(lg=0, vm=16), barrier()])
        put(2, salu(f"s_cmp_eq_u32 {sCNT}, 3"))
        put(3, salu(f"s_cselect_b32 {sT[6]}, 0, 0x80000"))
        put(OB - 2, salu(f"s_mov_b32 s26, {sT[6]}"))
    for key, ag in OS.items():
        kind = key[0]
        g = ag % 320
        if kind == "r":
            _, sl, G, jj = key
            own = p if ag >= 320 else p + 1
            if tail:
                continue
            put(g, o_rd(sl, G, jj, own))
        elif kind in ("m0", "so", "d"):
            own = p if ag < 320 else p - 1
            sl, i = key[1], key[2]
            if tail:
                continue
            b, k = o_soff(sl)
            if kind == "m0":
                put(g, salu(f"s_add_u32 m0, {sMWO}, {WSLOT[sl] + (i // 4) * 4096}"))
            elif kind == "so":
                put(g, salu(f"s_add_u32 {sT[i & 1]}, {b}, {k + i * 8192 - (i & 3) * 1024 + 256}"))
            else:
                ver = ("wo", own + 1, sl) if own < 3 else ("dummy", sl)
                put(g, dma(VWO, sWO, sT[i & 1], (i & 3) * 1024, tag=(blk_woi(sl, i), ver), nt=OPT["nt_w"]))
        elif kind in ("c", "st", "stadv", "stsz", "padv"):
            if tail and ag < 320:
                continue
            if kind == "c":
                _, v, qt, h = key
                put(g, cvt(off(PK(qt, v >> 1), 2 * (v & 1) + h), off(OUT(v, qt), 2 * h), off(OUT(v, qt), 2 * h + 1)))
            elif kind == "st":
                _, qt, y = key
                k = qt * 2 + y
                put(g, vst4(PK(qt, y), VST, sWS, [sST, sT[2], sT[3]][k >> 2], (k & 3) * 1024))
            elif kind == "stadv":
                put(g, [salu(f"s_add_u32 {sST}, {sST}, 40960")])
            elif kind == "stsz" and not tail:
                put(g, [salu(f"s_add_u32 {sT[2]}, {sST}, 4096"), salu(f"s_add_u32 {sT[3]}, {sST}, 8192"), salu("s_mov_b32 s30, 163840")][key[1]])
            elif kind == "padv" and not tail:
                r_ = [sWOown, sWOpar][key[1]]
                put(g, salu(f"s_add_u32 {r_}, {r_}, 256"))
    return emit_gaps(mf, fill)


def f32bits(x):
    return struct.unpack("<I", struct.pack("<f", x))[0]


NSTAMP = [0]


def stamp(k):
    if not OPT["stamp"]:
        return []
    return [raw("s_memtime s[90:91]"), wait(lg=0), salu(f"s_mov_b32 s{68 + k}, s90")]


def init_code():
    c = []
    A = c.append
    A(salu("s_cmp_ge_u32 s2, 256"))
    A(br("s_cbranch_scc1 L_end"))
    A(raw("s_load_dwordx16 s[64:79], s[0:1], 0"))
    A(raw("s_load_dwordx8 s[80:87], s[0:1], 64"))
    A(raw("s_load_dwordx2 s[88:89], s[0:1], 96"))
    l, m, g, rp, cp = "v172", "v173", "v174", "v175", "v176"
    t0, t1, t2, Fm, Fv, mv = "v177", "v178", "v179", "v180", "v181", "v182"
    A(valu("v_lshrrev_b32 v1, 6, v0"))
    A(valu(f"v_and_b32 {l}, 63, v0"))
    A(valu(f"v_readfirstlane_b32 {sWV}, v1"))
    A(valu(f"v_and_b32 {m}, 15, v0"))
    A(valu(f"v_bfe_u32 {g}, v0, 4, 2"))
    A(valu(f"v_bfe_u32 {rp}, v0, 2, 2"))
    A(valu(f"v_and_b32 {cp}, 3, v0"))
    A(salu(f"s_lshr_b32 {sHP}, {sWV}, 1"))
    A(salu(f"s_and_b32 {sQH}, {sWV}, 1"))
    sI, sJ, sBB, sG, sBR, sB = "s42", "s43", "s44", "s45", "s46", "s47"
    A(salu(f"s_and_b32 {sI}, s2, 7"))
    A(salu(f"s_lshr_b32 {sJ}, s2, 3"))
    A(salu(f"s_lshr_b32 {sBB}, {sJ}, 3"))
    A(salu(f"s_lshl_b32 {sI}, {sI}, 2"))
    A(salu(f"s_add_u32 {sBB}, {sBB}, {sI}"))
    A(salu(f"s_and_b32 {sG}, {sJ}, 7"))
    A(salu(f"s_lshr_b32 {sBR}, {sBB}, 4"))
    A(salu(f"s_and_b32 {sB}, {sBB}, 15"))
    A(salu(f"s_lshl_b32 {sROT}, {sB}, 1"))
    A(salu(f"s_add_u32 {sROT}, {sROT}, {sG}"))
    A(salu(f"s_and_b32 {sROT}, {sROT}, 7"))

    def F(dst, x):
        A(valu(f"v_and_b32 {t0}, 7, {x}"))
        A(valu(f"v_lshrrev_b32 {t1}, 3, {x}"))
        A(valu(f"v_lshlrev_b32 {t0}, 1, {t0}"))
        A(valu(f"v_mul_u32_u24 {t1}, 9, {t1}"))
        A(valu(f"v_xor_b32 {dst}, {t0}, {t1}"))

    sRH = "s48"
    A(salu(f"s_lshl_b32 {sRH}, {sHP}, 16"))
    A(salu(f"s_lshl_b32 {sTMP}, {sQH}, 12"))
    A(salu(f"s_add_u32 {sMKV}, {sRH}, {sTMP}"))
    A(salu(f"s_cmp_eq_u32 {sHP}, 0"))
    A(salu(f"s_mov_b32 s49, {WQB[1]}"))
    A(salu(f"s_cselect_b32 s49, {WQB[0]}, s49"))
    A(salu(f"s_add_u32 {sMWQ}, s49, {sTMP}"))
    A(salu(f"s_mul_i32 {sMX}, {sWV}, 5120"))
    A(salu(f"s_add_u32 {sMX}, {sMX}, {XRING}"))
    A(salu(f"s_mul_i32 {sXW}, {sWV}, 40960"))
    A(salu(f"s_lshl_b32 {sMWO}, {sWV}, 13"))
    A(valu(f"v_lshrrev_b32 {t0}, 3, {l}"))
    A(valu(f"v_and_b32 {t1}, 7, {l}"))
    A(valu(f"v_xor_b32 {t1}, {t1}, {g}"))
    A(valu(f"v_lshlrev_b32 {t1}, 4, {t1}"))
    A(valu(f"v_lshl_add_u32 {t2}, {t0}, 10, {t1}"))
    A(salu(f"s_lshl_b32 {sTMP}, {sQH}, 6"))
    A(valu(f"v_xor_b32 {VX[0]}, {sTMP}, {t2}"))
    A(valu(f"v_xor_b32 {VX[1]}, 64, {VX[0]}"))
    A(valu(f"v_and_b32 {t1}, 7, {l}"))
    A(valu(f"v_lshlrev_b32 {t2}, 1, {g}"))
    A(valu(f"v_xor_b32 {t1}, {t1}, {t2}"))
    A(valu(f"v_lshlrev_b32 {t1}, 4, {t1}"))
    A(valu(f"v_lshl_add_u32 {t1}, {t0}, 10, {t1}"))
    A(salu(f"s_lshl_b32 {sTMP}, {sQH}, 16"))
    A(salu(f"s_lshl_b32 {sTMP2}, {sHP}, 7"))
    A(salu(f"s_add_u32 {sTMP}, {sTMP}, {sTMP2}"))
    A(valu(f"v_add_u32 {VWO}, {sTMP}, {t1}"))
    A(valu(f"v_lshlrev_b32 {t0}, 2, {g}"))
    A(valu(f"v_xor_b32 {t0}, {t0}, {m}"))
    A(valu(f"v_lshlrev_b32 {t0}, 4, {t0}"))
    A(valu(f"v_lshl_add_u32 {t0}, {g}, 13, {t0}"))
    A(salu(f"s_lshl_b32 {sTMP}, {sQH}, 17"))
    A(valu(f"v_add_u32 {VWQ}, {sTMP}, {t0}"))
    A(wait(lg=0))
    A(salu(f"s_cmp_eq_u32 {sBR}, 0"))
    A(salu("s_cselect_b64 s[8:9], s[64:65], s[74:75]"))
    A(salu("s_cselect_b64 s[16:17], s[66:67], s[76:77]"))
    A(salu("s_cselect_b64 s[20:21], s[68:69], s[78:79]"))
    A(salu("s_cselect_b64 s[12:13], s[70:71], s[80:81]"))
    A(salu("s_cselect_b64 s[24:25], s[72:73], s[82:83]"))

    def addbase(lo, offreg):
        A(salu(f"s_add_u32 s{lo}, s{lo}, {offreg}"))
        A(salu(f"s_addc_u32 s{lo + 1}, s{lo + 1}, 0"))
        A(salu(f"s_and_b32 s{lo + 1}, s{lo + 1}, 0xffff"))
        A(salu(f"s_mov_b32 s{lo + 3}, 0x20000"))

    A(salu(f"s_mul_i32 {sTMP}, {sB}, 163840"))
    addbase(8, sTMP)
    sHD = "s43"
    A(salu(f"s_lshl_b32 {sHD}, {sG}, 1"))
    A(salu(f"s_add_u32 {sHD}, {sHD}, {sHP}"))
    A(salu(f"s_lshl_b32 {sHD}, {sHD}, 1"))
    A(salu(f"s_lshl_b32 {sTMP}, {sHD}, 8"))
    addbase(12, sTMP)
    A(salu(f"s_sub_u32 {sTMP2}, 0x400000, {sTMP}"))
    A(salu(f"s_mov_b32 {sRND}, 0"))
    return c, dict(l=l, m=m, g=g, rp=rp, cp=cp, t0=t0, t1=t1, t2=t2, Fm=Fm, Fv=Fv, mv=mv, sB=sB, sG=sG, sHD=sHD, sBB=sBB, sRH=sRH, F=F)


def init_code2(c, d):
    A = c.append
    l, m, g, rp, cp, t0, t1, t2, Fm, Fv, mv = (d[k] for k in ("l", "m", "g", "rp", "cp", "t0", "t1", "t2", "Fm", "Fv", "mv"))
    sB, sG, sHD, sBB, sRH, sWQB = "s92", "s93", "s94", "s95", "s96", "s97"

    def F(dst, x):
        A(valu(f"v_and_b32 {t0}, 7, {x}"))
        A(valu(f"v_lshrrev_b32 {t1}, 3, {x}"))
        A(valu(f"v_lshlrev_b32 {t0}, 1, {t0}"))
        A(valu(f"v_mul_u32_u24 {t1}, 9, {t1}"))
        A(valu(f"v_xor_b32 {dst}, {t0}, {t1}"))

    def addbase(lo, offreg):
        A(salu(f"s_add_u32 s{lo}, s{lo}, {offreg}"))
        A(salu(f"s_addc_u32 s{lo + 1}, s{lo + 1}, 0"))
        A(salu(f"s_and_b32 s{lo + 1}, s{lo + 1}, 0xffff"))
        A(salu(f"s_mov_b32 s{lo + 3}, 0x20000"))

    A(salu(f"s_lshl_b32 {sTMP}, {sB}, 5"))
    A(salu(f"s_add_u32 {sTMP}, {sTMP}, {sHD}"))
    A(salu(f"s_lshl_b32 {sTMP}, {sTMP}, 17"))
    addbase(16, sTMP)
    addbase(20, sTMP)
    A(salu(f"s_mov_b32 s18, {KVSZ}"))
    A(salu(f"s_mov_b32 s22, {KVSZ}"))
    A(salu(f"s_lshl_b32 {sTMP}, {sG}, 19"))
    addbase(24, sTMP)
    A(salu("s_mov_b32 s26, 0x80000"))
    A(salu("s_mov_b64 s[28:29], s[88:89]"))
    A(salu(f"s_lshl_b32 {sTMP}, {sBB}, 3"))
    A(salu(f"s_add_u32 {sTMP}, {sTMP}, {sG}"))
    A(salu(f"s_mul_i32 {sTMP}, {sTMP}, 163840"))
    addbase(28, sTMP)
    A(salu("s_mov_b32 s30, 0"))
    A(salu(f"s_lshl_b32 {sWOown}, {sHP}, 18"))
    A(salu(f"s_xor_b32 {sWOpar}, {sWOown}, 0x40000"))
    A(salu(f"s_sub_u32 {sWOown}, {sWOown}, 256"))
    A(salu(f"s_sub_u32 {sWOpar}, {sWOpar}, 256"))
    cc = f32bits(math.log2(math.e) / math.sqrt(128.0))
    A(salu(f"s_mov_b32 s54, {cc:#x}"))
    A(salu(f"s_mov_b32 s55, {cc:#x}"))
    A(salu(f"s_mov_b32 {sSAFE}, 0"))
    A(salu(f"s_mul_i32 {sTMP}, {sQH}, 10240"))
    A(salu(f"s_add_u32 {sTMP}, {sTMP}, {XRING}"))
    A(valu(f"v_lshrrev_b32 {t0}, 1, {m}"))
    A(valu(f"v_xor_b32 {t0}, {t0}, {g}"))
    A(valu(f"v_lshlrev_b32 {t0}, 4, {t0}"))
    A(valu(f"v_lshl_add_u32 {t0}, {m}, 7, {t0}"))
    A(valu(f"v_add_u32 {AX[0]}, {sTMP}, {t0}"))
    A(valu(f"v_xor_b32 {AX[1]}, 64, {AX[0]}"))
    A(valu(f"v_lshl_add_u32 {t0}, {g}, 3, {rp}"))
    A(valu(f"v_lshl_add_u32 {t1}, {rp}, 2, {cp}"))
    A(valu(f"v_lshlrev_b32 {t1}, 4, {t1}"))
    A(valu(f"v_lshl_add_u32 {t0}, {t0}, 8, {t1}"))
    A(valu(f"v_add_u32 {AWQ[0]}, {sWQB}, {t0}"))
    for s_ in range(1, 4):
        A(valu(f"v_xor_b32 {AWQ[s_]}, {s_ * 64}, {AWQ[0]}"))
    A(salu(f"s_lshl_b32 {sTMP}, {sQH}, 12"))
    for i in range(4):
        A(valu(f"v_add_u32 {t2}, {4 * i}, {g}"))
        F(Fm, t2)
        A(valu(f"v_xor_b32 {Fm}, {Fm}, {m}"))
        A(valu(f"v_lshlrev_b32 {Fm}, 4, {Fm}"))
        A(valu(f"v_lshl_add_u32 {Fm}, {g}, 8, {Fm}"))
        A(valu(f"v_add_u32 {VKV[i]}, {sTMP}, {Fm}"))
    F(Fm, m)
    A(valu(f"v_xor_b32 {Fm}, {Fm}, {g}"))
    A(valu(f"v_lshlrev_b32 {Fm}, 4, {Fm}"))
    A(valu(f"v_lshl_add_u32 {Fm}, {m}, 8, {Fm}"))
    A(valu(f"v_add_u32 {AK[0]}, {sRH}, {Fm}"))
    for s_ in range(1, 4):
        A(valu(f"v_xor_b32 {AK[s_]}, {s_ * 64}, {AK[0]}"))
    A(valu(f"v_lshl_add_u32 {mv}, {g}, 2, {rp}"))
    F(Fv, mv)
    A(valu(f"v_lshrrev_b32 {t0}, 1, {cp}"))
    A(valu(f"v_xor_b32 {Fv}, {Fv}, {t0}"))
    A(valu(f"v_lshlrev_b32 {Fv}, 4, {Fv}"))
    A(valu(f"v_lshl_add_u32 {Fv}, {mv}, 8, {Fv}"))
    A(valu(f"v_and_b32 {t1}, 1, {cp}"))
    A(valu(f"v_lshl_add_u32 {Fv}, {t1}, 3, {Fv}"))
    A(salu(f"s_add_u32 {sTMP}, {sRH}, 8192"))
    A(valu(f"v_add_u32 {AV[0]}, {sTMP}, {Fv}"))
    for u in range(1, 8):
        A(valu(f"v_xor_b32 {AV[u]}, {u * 32}, {AV[0]}"))
    A(valu(f"v_and_b32 {t2}, 6, {mv}"))
    A(valu(f"v_xor_b32 {t2}, {t2}, {t0}"))
    A(valu(f"v_lshlrev_b32 {t2}, 4, {t2}"))
    A(valu(f"v_lshl_add_u32 {t2}, {mv}, 7, {t2}"))
    A(valu(f"v_lshl_add_u32 {t2}, {t1}, 3, {t2}"))
    A(salu(f"s_lshl_b32 {sTMP}, {sHP}, 14"))
    A(valu(f"v_add_u32 v252, {sTMP}, {t2}"))
    for v in range(1, 4):
        A(valu(f"v_xor_b32 v{252 + v}, {v * 32}, v252"))
    A(valu(f"v_lshlrev_b32 {VST}, 4, {l}"))
    A(salu(f"s_lshl_b32 {sTMP}, {sWV}, 2"))
    A(salu(f"s_add_u32 {sTMP}, {sTMP}, {FLAGS}"))
    A(valu(f"v_mov_b32 {VFL}, {sTMP}"))
    for k in range(4):
        A(valu(f"v_mov_b32 {off(ONES, k)}, 0x3f803f80"))


def q_epilogue(rnd):
    c = [wait(lg=0, vm=0), barrier()]
    c += kv_group([("K", 2), ("V", 1), ("K", 3), ("V", 2)], rnd)
    for f in range(20):
        b = QFB + 8 * f
        for k in range(4):
            c.append(valu(f"v_pk_mul_f32 v[{b + 2 * k}:{b + 2 * k + 1}], v[{b + 2 * k}:{b + 2 * k + 1}], s[54:55]"))
        for k in range(4):
            c.append(cvt(f"v{QFB + 4 * f + k}", f"v{b + 2 * k}", f"v{b + 2 * k + 1}"))
    for k in range(20):
        c.append(valu(f"v_mov_b32 v{NM + k}, 0"))
    return c


LO, HI = 2.0 ** -12, 2.0 ** 32


def a_check():
    c = []
    A = c.append
    A(valu(f"v_min3_f32 v1, {L_(0)}, {L_(1)}, {L_(2)}"))
    A(valu(f"v_max3_f32 v2, {L_(0)}, {L_(1)}, {L_(2)}"))
    A(valu(f"v_min3_f32 v1, v1, {L_(3)}, {L_(4)}"))
    A(valu(f"v_max3_f32 v2, v2, {L_(3)}, {L_(4)}"))
    A(valu(f"v_cmp_gt_f32 vcc, {f32bits(LO if not OPT['force_fb'] else 1e30):#x}, v1"))
    A(nop(1))
    A(salu("s_mov_b64 s[42:43], vcc"))
    A(valu(f"v_cmp_lt_f32 vcc, {f32bits(HI):#x}, v2"))
    A(nop(1))
    A(salu("s_or_b64 s[42:43], s[42:43], vcc"))
    A(salu("s_cselect_b32 s42, 1, 0"))
    A(valu("v_mov_b32 v1, s42"))
    A(ds_w32(VFL, "v1", 0, tag=(blocks((FLAGS, 1024)), "flag")))
    A(valu(f"v_mov_b32 v2, {FLAGS}"))
    A(salu(f"s_mov_b32 s18, {KVSZ}"))
    A(salu(f"s_mov_b32 s22, {KVSZ}"))
    A(wait(lg=0, vm=0))
    A(barrier())
    A(ds_r128(S_(0, 0), "v2", 0, tag=(blocks((FLAGS, 1024)), "flag")))
    return c


def a_check2():
    c = []
    A = c.append
    s0 = SB
    A(wait(lg=0))
    A(valu(f"v_or3_b32 v1, v{s0}, v{s0 + 1}, v{s0 + 2}"))
    A(valu(f"v_or_b32 v1, v1, v{s0 + 3}"))
    A(valu(f"v_readfirstlane_b32 s42, v1"))
    A(nop(1))
    A(salu(f"s_andn2_b32 s42, s42, {sSAFE}"))
    A(br("s_cbranch_scc1 L_fallback"))
    return c


def o_epilogue():
    c = []
    for qt in range(5):
        c.append(vrcp(L_(qt), L_(qt)))
    k = 0
    for s_ in range(4):
        for qt in range(5):
            tb = SB + 8 * (k & 3)
            k += 1
            for t in range(2):
                for r in range(4):
                    c.append(valu(f"v_accvgpr_read_b32 v{tb + 4 * t + r}, {off(OACC(2 * s_ + t, qt), r)}"))
            lq = int(L_(qt)[1:])
            for h in range(4):
                c.append(valu(f"v_pk_mul_f32 v[{tb + 2 * h}:{tb + 2 * h + 1}], v[{tb + 2 * h}:{tb + 2 * h + 1}], v[{lq}:{lq + 1}] op_sel_hi:[1,0]"))
            for h in range(4):
                c.append(cvt(off(QF(s_, qt), h), f"v{tb + 2 * h}", f"v{tb + 2 * h + 1}"))
    return c


def blk_E(): return blocks((0, 81920))
def blk_Ei(f): return blocks(*[(w * 20480 + f * 1024, 1024) for w in range(4)])


def xchg_write(src, ver):
    c = []
    for f in range(20):
        if f == 14:
            c.append(wait(lg=8))
        c.append(ds_w128("v1", src(f // 5, f % 5), f * 1024, tag=(blk_Ei(f), ver)))
    return c


def xchg_read(base, ver):
    c = []
    for f in range(20):
        if f == 14:
            c.append(wait(lg=8))
        c.append(ds_r128(f"a{base + 4 * f}", "v2", f * 1024, tag=(blk_E(), ver)))
    return c


def fallback_code():
    c = []
    A = c.append
    A(label("L_fallback"))
    A(wait(lg=0, vm=0))
    A(barrier())
    A(salu(f"s_mov_b32 {sSAFE}, 1"))
    M = [f"v{PB + k}" for k in range(5)]
    for qt in range(5):
        A(valu(f"v_mov_b32 {M[qt]}, 0xff800000"))
    for k in range(160):
        A(valu(f"v_accvgpr_write_b32 a{k}, 0"))
    A(salu(f"s_lshl_b32 {sOK}, {sRND}, 17"))
    A(salu(f"s_mov_b32 {sCNT}, 0"))
    A(label("L_fb_loop"))
    A(salu(f"s_mov_b32 m0, {sMKV}"))
    A(nop(0))
    for i in range(4):
        A(dma(VKV[i], sK, sOK, i * 1024))
    A(wait(vm=0))
    A(barrier())
    for f in range(8):
        A(ds_r128(FB[f], AK[f & 3], (f >> 2) * 4096))
    A(wait(lg=0))
    A(barrier())
    for t in range(2):
        for s_ in range(4):
            for qt in range(5):
                A(mfma(S_(t, qt), FB[t * 4 + s_], QF(s_, qt), 0 if s_ == 0 else S_(t, qt)))
    A(nop(9))
    for qt in range(5):
        for t in range(2):
            b = S_(t, qt)
            A(valu(f"v_max3_f32 {M[qt]}, {M[qt]}, {off(b, 0)}, {off(b, 1)}"))
            A(valu(f"v_max3_f32 {M[qt]}, {M[qt]}, {off(b, 2)}, {off(b, 3)}"))
    A(salu(f"s_add_u32 {sOK}, {sOK}, 8192"))
    A(salu(f"s_add_u32 {sCNT}, {sCNT}, 1"))
    A(salu(f"s_cmp_lt_u32 {sCNT}, 16"))
    A(br("s_cbranch_scc1 L_fb_loop"))
    for qt in range(5):
        for op in ("v_permlane32_swap_b32", "v_permlane16_swap_b32"):
            A(valu(f"v_mov_b32 v1, {M[qt]}"))
            A(nop(1))
            A(valu(f"{op} {M[qt]}, v1"))
            A(nop(1))
            A(valu(f"v_max_f32 {M[qt]}, {M[qt]}, v1"))
        for r in range(4):
            A(valu(f"v_sub_f32 {off(NEGM(qt), r)}, 0, {M[qt]}"))
    c += kv_group([("K", 0), ("V", 0), ("K", 1), ("K", 2), ("V", 1), ("K", 3), ("V", 2)], 0)
    A(wait(vm=16))
    A(barrier())
    A(br("s_branch L_attn"))
    return c


def dump_regs(regs, endlabel="L_end"):
    c = [wait(lg=0, vm=0), nop(10), salu("s_mov_b32 s30, 163840"), salu(f"s_mul_i32 {sST}, {sWV}, 40960")]
    for k, r in enumerate(regs):
        c.append(vst4(r, VST, sWS, sST, 0))
        c.append(salu(f"s_add_u32 {sST}, {sST}, 1024"))
    c.append(wait(vm=0))
    c.append(raw("s_endpgm"))
    return c


def build():
    c, d = init_code()
    for a, b in (("s92", d["sB"]), ("s93", d["sG"]), ("s94", d["sHD"]), ("s95", d["sBB"]), ("s96", d["sRH"]), ("s97", "s49")):
        c.append(salu(f"s_mov_b32 {a}, {b}"))
    c += q_initial_dmas(0)
    init_code2(c, d)
    c += stamp(0)
    init = seg("init", c)

    def rounds(rnd):
        tr = []
        qe = [label("L_q")] + q_entry(rnd)
        kvp = [salu(f"s_cmp_eq_u32 {sRND}, 0"), br("s_cbranch_scc0 L_q0")] + kv_group([("K", 0), ("V", 0), ("K", 1)], 0) + [label("L_q0"), salu(f"s_mov_b32 {sCNT}, 0")]
        q0 = q_kstep(0, rnd, first=True)
        qb = [q_kstep(e, rnd) for e in range(1, 16)]
        return qe, kvp, q0, qb

    def q_exit():
        return [salu(f"s_cmp_eq_u32 {sCNT}, 3"), br("s_cbranch_scc1 L_qdone")]

    def q_back():
        return [salu(f"s_add_u32 {sCNT}, {sCNT}, 1"), br("s_branch L_qloop")]

    def a_exit():
        return [salu(f"s_cmp_eq_u32 {sCNT}, 3"), br("s_cbranch_scc1 L_atail")]

    def a_back():
        return [salu(f"s_add_u32 {sCNT}, {sCNT}, 1"), br("s_branch L_aloop")]

    static = []
    trace = []
    static += init
    trace += init
    for rnd in range(2):
        qe, kvp, q0, qb = rounds(rnd)
        qep = [label("L_qdone")] + stamp(1 + 4 * rnd if False else 1) + q_epilogue(rnd)
        ae = [label("L_attn")] + stamp(2) + a_entry(rnd)
        ap = a_iter(-1, rnd)
        ab = [a_iter(j, rnd) for j in range(15)]
        at = [label("L_atail")] + a_iter(15, rnd) + stamp(3) + a_check()
        pre0 = q_initial_dmas(1)
        pre0 = [salu(f"s_mov_b32 {sRND}, 1")] + pre0 + [salu(f"s_mov_b32 {sRND}, 0")]
        pre1 = o_dma_slot(0, 0) + o_dma_slot(1, 0)
        pre1 += [salu(f"s_mul_i32 {sTMP}, {sWV}, 20480"), valu(f"v_add_u32 v3, {sTMP}, {VST}")]
        chk2 = a_check2()
        w0 = [valu("v_mov_b32 v1, v3")] + xchg_write(HF, "E0")
        oep = o_epilogue()
        cpH = [valu(f"v_accvgpr_write_b32 a{160 + k}, v{QFB + k}") for k in range(80)]
        cpH += [salu(f"s_mov_b32 {sRND}, 1"), salu(f"s_mov_b32 {sSAFE}, 0")] + (
            [salu(f"s_mov_b32 s{68 + 4 + k}, s{68 + k}") for k in range(1, 4)] if OPT["stamp"] else []) + stamp(4) + [br("s_branch L_q")]
        qe, kvp, q0, qep, ae, ap, at = (seg(n, x_) for n, x_ in (("qe", qe), ("kvp", kvp), ("q0", q0), ("qep", qep), ("ae", ae), ("ap", ap), ("at", at)))
        pre0, pre1, chk2, w0, oep, cpH = (seg(n, x_) for n, x_ in (("pre0", pre0), ("pre1", pre1), ("chk2", chk2), ("w0", w0), ("oep", oep), ("cpH", cpH)))
        qb = [seg(f"qb{k & 3}", x_) for k, x_ in enumerate(qb)]
        ab = [seg(f"ab{k & 3}", x_) for k, x_ in enumerate(ab)]
        if rnd == 0:
            static += qe + kvp + q0 + [label("L_qloop")] + qb[0] + qb[1] + qb[2] + q_exit() + qb[3] + q_back()
            if OPT["dump"] == "q":
                qep = qep + dump_regs([QF(f // 5, f % 5) for f in range(20)])
            static += qep + ae + ap + [label("L_aloop")] + ab[0] + ab[1] + ab[2] + a_exit() + ab[3] + a_back() + at
            static += [salu(f"s_cmp_eq_u32 {sRND}, 0"), br("s_cbranch_scc0 L_pre1")] + pre0 + [br("s_branch L_chk"), label("L_pre1")] + pre1 + [label("L_chk")] + chk2
            static += [salu(f"s_cmp_eq_u32 {sRND}, 0"), br("s_cbranch_scc1 L_oep")] + w0 + [label("L_oep")] + oep
            if OPT["dump"] == "o":
                static += dump_regs([QF(f // 5, f % 5) for f in range(20)])
            static += [salu(f"s_cmp_eq_u32 {sRND}, 0"), br("s_cbranch_scc0 L_x")] + cpH + [label("L_x")]
        for e in range(1, 12):
            assert [i.text for i in qb[e - 1]] == [i.text for i in qb[e + 3]], e
        for j in range(11):
            assert [i.text for i in ab[j]] == [i.text for i in ab[j + 4]], j
        trace += qe + (kvp if rnd == 0 else [kvp[0], kvp[1], kvp[-1]]) + q0
        for e in range(1, 16):
            trace += qb[e - 1]
            if e % 4 == 3:
                trace += q_exit()
            if e % 4 == 0:
                trace += q_back()
        trace += qep + ae + ap
        for j in range(15):
            trace += ab[j]
            if j % 4 == 2:
                trace += a_exit()
            if j % 4 == 3:
                trace += a_back()
        trace += at + (pre0 if rnd == 0 else pre1) + chk2 + ([] if rnd == 0 else w0) + oep + (cpH if rnd == 0 else [])
    x = stamp(8)
    x += [salu(f"s_xor_b32 {sTMP}, {sWV}, 2"), salu(f"s_mul_i32 {sTMP}, {sTMP}, 20480"), valu(f"v_add_u32 v2, {sTMP}, {VST}")]
    x += [wait(lg=0), barrier()] + xchg_read(0, "E0") + [wait(lg=0), barrier()]
    x += xchg_write(QF, "E1")
    for v in range(4):
        x.append(valu(f"v_mov_b32 {AWO[v]}, v{252 + v}"))
        x.append(valu(f"v_add_u32 {AWO[4 + v]}, {WSLOT[1]}, v{252 + v}"))
    x += [wait(lg=0), barrier()] + xchg_read(80, "E1") + [wait(lg=0, vm=8), barrier()]
    x += o_dma_slot(2, 0)
    x += [salu(f"s_mul_i32 {sST}, {sWV}, 10240"), salu(f"s_sub_u32 {sST}, {sST}, 40960"), salu(f"s_mov_b32 {sCNT}, 0")]
    x += [salu(f"s_mov_b32 {sT[2]}, 0"), salu(f"s_mov_b32 {sT[3]}, 0")]
    for key, ag in OS.items():
        if key[0] == "r" and ag < 320:
            x.append(o_rd(key[1], key[2], key[3], 0))
    x += wsite(("oe",))
    x += stamp(9)
    x = seg("x", x)
    op = [seg("op", o_pass(p)) for p in range(4)]
    for p in range(3):
        assert [i.text for i in op[p]] == [i.text for i in op[p + 1]]
    oback = [salu(f"s_add_u32 {sCNT}, {sCNT}, 1"), salu(f"s_cmp_lt_u32 {sCNT}, 4"), br("s_cbranch_scc1 L_oloop")]
    ot = seg("ot", o_pass(4, tail=True))
    fin = stamp(10)
    if OPT["stamp"]:
        fin += [wait(vm=0)] + stamp(11)
        fin += [salu("s_mov_b64 s[28:29], s[88:89]"), salu("s_add_u32 s28, s28, 0x4000000"), salu("s_addc_u32 s29, s29, 0"),
                salu("s_and_b32 s29, s29, 0xffff"), salu("s_mov_b32 s30, 65536"),
                salu(f"s_lshl_b32 {sTMP}, s2, 2"), salu(f"s_add_u32 {sTMP}, {sTMP}, {sWV}"), salu(f"s_lshl_b32 {sTMP}, {sTMP}, 6")]
        for k in range(12):
            fin.append(valu(f"v_mov_b32 v{100 + k}, s{68 + k}"))
        fin.append(valu("v_mov_b32 v1, 0"))
        for k in range(3):
            fin.append(vst4(f"v{100 + 4 * k}", "v1", sWS, sTMP, 16 * k))
    fin += [label("L_end"), raw("s_endpgm")]
    fin = seg("fin", fin)
    static += x + [label("L_oloop")] + op[0] + oback + ot + fin
    trace += x
    for p in range(4):
        trace += op[p] + oback
    trace += ot + fin
    static += fallback_code()
    return static, trace


def finalize():
    CTX.W = {}
    static, trace = build()
    CTX.W = resolve_sites(trace)
    static, trace = build()
    for _ in range(2000):
        errs = check_hazards(trace, "trace")
        if not errs:
            break
        seen = set()
        for j, extra, msg in errs:
            pos = trace[j].pos
            if pos[0] in seen:
                continue
            seen.add(pos[0])
            mx = max(e for (jj, e, _m) in errs if jj == j)
            NOPS[pos] = NOPS.get(pos, 0) + mx
            print("nop:", pos, msg, file=sys.stderr)
        static, trace = build()
    lastscc = None
    for i in trace:
        if "scc" in i.rd:
            okl = ("s_add_u32",) if i.text.startswith("s_addc") else ("s_cmp", "s_or_b64 s[42:43]", f"s_andn2_b32 s42")
            assert lastscc.startswith(okl), (lastscc, i.text)
        if "scc" in i.wr:
            lastscc = i.text
    errs = check_counters(trace, "trace")
    for e in errs[:40]:
        print("ERR", e, file=sys.stderr)
    fb = static[[k for k, x in enumerate(static) if x.text == "L_fallback:"][0]:]
    for e in check_hazards(fb, "fb"):
        print("ERR fb", e[2], file=sys.stderr)
    if errs:
        raise RuntimeError("counter check failed")
    return static


def reduce_kernel():
    L = []
    A = L.append
    A("s_cmp_ge_u32 s2, 640")
    A("s_cbranch_scc1 R_end")
    A("s_load_dwordx2 s[4:5], s[0:1], 80")
    A("s_load_dwordx2 s[8:9], s[0:1], 96")
    A("v_lshrrev_b32 v1, 6, v0")
    A("v_and_b32 v2, 63, v0")
    A("v_readfirstlane_b32 s16, v1")
    A("s_and_b32 s17, s2, 7")
    A("s_lshr_b32 s18, s2, 3")
    A("s_mul_i32 s19, s18, 205")
    A("s_lshr_b32 s19, s19, 12")
    A("s_mul_i32 s20, s19, 20")
    A("s_sub_u32 s20, s18, s20")
    A("s_lshl_b32 s17, s17, 2")
    A("s_add_u32 s17, s17, s19")
    A("s_lshl_b32 s20, s20, 2")
    A("s_add_u32 s20, s20, s16")
    A("s_mul_i32 s21, s17, 1310720")
    A("s_lshl_b32 s22, s20, 11")
    A("s_add_u32 s21, s21, s22")
    A("v_lshlrev_b32 v3, 4, v2")
    A("s_waitcnt lgkmcnt(0)")
    A("s_and_b32 s9, s9, 0xffff")
    A(f"s_mov_b32 s10, {256 * 163840}")
    A("s_mov_b32 s11, 0x20000")
    for g in range(8):
        for y in range(2):
            r = 16 + (g * 2 + y) * 4
            A(f"buffer_load_dwordx4 v[{r}:{r + 3}], v3, s[8:11], s21 offen offset:{y * 1024}")
        if g < 7:
            A("s_add_u32 s21, s21, 163840")
    A("s_and_b32 s5, s5, 0xffff")
    A(f"s_mov_b32 s6, {16 * 160 * 1024 * 2}")
    A("s_mov_b32 s7, 0x20000")
    A("s_mul_i32 s23, s20, 205")
    A("s_lshr_b32 s23, s23, 12")
    A("s_mul_i32 s24, s23, 20")
    A("s_sub_u32 s24, s20, s24")
    A("s_mul_i32 s25, s24, 205")
    A("s_lshr_b32 s25, s25, 10")
    A("s_mul_i32 s26, s25, 5")
    A("s_sub_u32 s26, s24, s26")
    A("s_and_b32 s27, s25, 1")
    A("s_lshr_b32 s28, s25, 1")
    A("s_and_b32 s29, s17, 15")
    A("s_lshr_b32 s30, s17, 4")
    A("s_mul_i32 s29, s29, 160")
    A("s_mul_i32 s27, s27, 80")
    A("s_add_u32 s29, s29, s27")
    A("s_lshl_b32 s26, s26, 4")
    A("s_add_u32 s29, s29, s26")
    A("s_lshl_b32 s29, s29, 11")
    A("s_lshl_b32 s30, s30, 10")
    A("s_add_u32 s29, s29, s30")
    A("s_lshl_b32 s23, s23, 8")
    A("s_add_u32 s29, s29, s23")
    A("s_lshl_b32 s28, s28, 7")
    A("s_add_u32 s29, s29, s28")
    A("v_and_b32 v4, 15, v2")
    A("v_lshrrev_b32 v5, 4, v2")
    A("v_lshlrev_b32 v4, 11, v4")
    A("v_lshl_add_u32 v4, v5, 4, v4")
    for g in range(8):
        A(f"s_waitcnt vmcnt({14 - 2 * g})")
        for k in range(8):
            r = 16 + g * 8 + k
            if g == 0:
                A(f"v_lshlrev_b32 v{80 + 2 * k}, 16, v{r}")
                A(f"v_and_b32 v{81 + 2 * k}, 0xffff0000, v{r}")
            else:
                A(f"v_lshlrev_b32 v6, 16, v{r}")
                A(f"v_and_b32 v7, 0xffff0000, v{r}")
                A(f"v_add_f32 v{80 + 2 * k}, v{80 + 2 * k}, v6")
                A(f"v_add_f32 v{81 + 2 * k}, v{81 + 2 * k}, v7")
    for k in range(8):
        A(f"v_cvt_pk_bf16_f32 v{8 + k}, v{80 + 2 * k}, v{81 + 2 * k}")
    A("s_nop 1")
    for y in range(2):
        for k in range(2):
            A(f"v_permlane32_swap_b32 v{8 + 4 * y + k}, v{10 + 4 * y + k}")
    A("s_nop 1")
    for y in range(2):
        for k in range(2):
            A(f"v_permlane16_swap_b32 v{8 + 4 * y + k}, v{10 + 4 * y + k}")
    A("s_nop 1")
    for y in range(2):
        A(f"buffer_store_dwordx4 v[{8 + 4 * y}:{11 + 4 * y}], v4, s[4:7], s29 offen offset:{64 * y}")
    A("R_end:")
    A("s_endpgm")
    return L


HEADER = open("cdna_kernels/" + NAME + ".s.ref").read().split("; Override launch geometry")[0]


def emit(path):
    static = finalize()
    out = [HEADER.rstrip()]
    out.append("; @launch kernel=mha_main_kernel grid=(256,1,1) block=(256,1,1) lds=163840")
    out.append("; @launch kernel=mha_reduce_kernel grid=(640,1,1) block=(256,1,1) lds=0")
    out.append('.amdgcn_target "amdgcn-amd-amdhsa--gfx950"')
    out.append(".text")
    out.append(".globl mha_main_kernel\n.p2align 8\n.type mha_main_kernel,@function\nmha_main_kernel:")
    for i in static:
        if i.kind == "label" and i.text[:-1] in ("L_qloop", "L_aloop", "L_oloop"):
            out.append(".p2align 3")
        out.append(("" if i.kind == "label" else "    ") + i.text)
    out.append(".globl mha_reduce_kernel\n.p2align 8\n.type mha_reduce_kernel,@function\nmha_reduce_kernel:")
    out += ["    " + x if not x.endswith(":") else x for x in reduce_kernel()]
    for kn, nv, ao, ns in (("mha_main_kernel", 512, 256, 102), ("mha_reduce_kernel", 96, 96, 40)):
        out.append('.section .rodata,"a"\n.p2align 6')
        out.append(f".amdhsa_kernel {kn}")
        out.append(f"  .amdhsa_next_free_vgpr {nv}\n  .amdhsa_next_free_sgpr {ns}\n  .amdhsa_accum_offset {ao}")
        out.append("  .amdhsa_group_segment_fixed_size 0\n  .amdhsa_kernarg_size 104\n  .amdhsa_user_sgpr_count 2")
        out.append("  .amdhsa_user_sgpr_kernarg_segment_ptr 1\n  .amdhsa_system_sgpr_workgroup_id_x 1")
        out.append(".end_amdhsa_kernel")
    open(path, "w").write("\n".join(out) + "\n")


if __name__ == "__main__":
    path = sys.argv[1]
    for a in sys.argv[2:]:
        k, v = a.split("=")
        OPT[k] = {"True": True, "False": False, "None": None}.get(v, v)
    emit(path)
```
